```python
import torch

def _softmax(x, axis=-1):
    return torch.softmax(x, dim=axis)
def _gelu(x):
    return torch.nn.functional.gelu(x, approximate="tanh")
def _silu(x):
    return torch.nn.functional.silu(x)
def _sigmoid(x):
    return torch.sigmoid(x)
def _layernorm(x, axis=-1, eps=1e-5):
    m = x.mean(dim=axis, keepdim=True)
    v = x.var(dim=axis, keepdim=True, unbiased=False)
    return (x - m) / torch.sqrt(v + eps)
def _scatter_add(tgt, idx, src, axis=0):
    return tgt.clone().index_add_(axis, idx, src)
def _segment_sum(src, seg, n):
    out = torch.zeros((n,) + src.shape[1:], dtype=src.dtype)
    return out.index_add_(0, seg, src)
def _pad(x, pw):
    flat = tuple(v for pair in reversed(pw) for v in pair)
    return torch.nn.functional.pad(x, flat)

kernel_name = 'concat_heads__mha_block_cached__mha_block_cached__near_ridge'

def setup_inputs():

    _w = (lambda a: (lambda t: t.to(torch.bfloat16) if t.is_floating_point() else t)(torch.as_tensor(a)))
    def _A_setup():
        B, Sq, D = 8, 288, 448
        H, Sk, Dh = 16, 1024, 256
        return {
            "x": _w((lambda *s: torch.randn(*s, dtype=torch.bfloat16) * 0.8)(B, Sq, D)),
            "k_cache": _w((lambda *s: torch.randn(*s, dtype=torch.bfloat16) * 0.8)(B, H, Sk, Dh)),
            "v_cache": _w((lambda *s: torch.randn(*s, dtype=torch.bfloat16) * 0.05)(B, H, Sk, Dh)),
            "wq": _w((lambda *s: torch.randn(*s, dtype=torch.bfloat16) * 0.8)(D, H * Dh) * (D ** -0.5)),
            "wo": _w((lambda *s: torch.randn(*s, dtype=torch.bfloat16) * 0.05)(H * Dh, D) * ((H * Dh) ** -0.5)),
        }
    _A_in = _A_setup()

    def _B_setup():
        B, Sq, D = 8, 288, 448
        H, Sk, Dh = 16, 1024, 256
        return {
            "x": _w((lambda *s: torch.randn(*s, dtype=torch.bfloat16) * 0.8)(B, Sq, D)),
            "k_cache": _w((lambda *s: torch.randn(*s, dtype=torch.bfloat16) * 0.8)(B, H, Sk, Dh)),
            "v_cache": _w((lambda *s: torch.randn(*s, dtype=torch.bfloat16) * 0.05)(B, H, Sk, Dh)),
            "wq": _w((lambda *s: torch.randn(*s, dtype=torch.bfloat16) * 0.8)(D, H * Dh) * (D ** -0.5)),
            "wo": _w((lambda *s: torch.randn(*s, dtype=torch.bfloat16) * 0.05)(H * Dh, D) * ((H * Dh) ** -0.5)),
        }
    _B_in = _B_setup()

    return {
        "A_x": _A_in["x"],
        "A_k_cache": _A_in["k_cache"],
        "A_v_cache": _A_in["v_cache"],
        "A_wq": _A_in["wq"],
        "A_wo": _A_in["wo"],
        "B_x": _B_in["x"],
        "B_k_cache": _B_in["k_cache"],
        "B_v_cache": _B_in["v_cache"],
        "B_wq": _B_in["wq"],
        "B_wo": _B_in["wo"],
    }

def reference(A_x, A_k_cache, A_v_cache, A_wq, A_wo, B_x, B_k_cache, B_v_cache, B_wq, B_wo):
    def _A_ref(x, k_cache, v_cache, wq, wo):
        B, Sq, D = x.shape
        H, Dh = 16, 256
        q = (lambda x, *d: x.permute(*d))((x @ wq).reshape(B, Sq, H, Dh), 0, 2, 1, 3)
        scores = torch.einsum("bhqd,bhkd->bhqk", q, k_cache) * (Dh ** -0.5)
        p = _softmax(scores, axis=-1)
        o = torch.einsum("bhqk,bhkd->bhqd", p, v_cache)
        return (lambda x, *d: x.permute(*d))(o, 0, 2, 1, 3).reshape(B, Sq, H * Dh) @ wo

    def _B_ref(x, k_cache, v_cache, wq, wo):
        B, Sq, D = x.shape
        H, Dh = 16, 256
        q = (lambda x, *d: x.permute(*d))((x @ wq).reshape(B, Sq, H, Dh), 0, 2, 1, 3)
        scores = torch.einsum("bhqd,bhkd->bhqk", q, k_cache) * (Dh ** -0.5)
        p = _softmax(scores, axis=-1)
        o = torch.einsum("bhqk,bhkd->bhqd", p, v_cache)
        return (lambda x, *d: x.permute(*d))(o, 0, 2, 1, 3).reshape(B, Sq, H * Dh) @ wo

    a = _A_ref(A_x, A_k_cache, A_v_cache, A_wq, A_wo)
    b = _B_ref(B_x, B_k_cache, B_v_cache, B_wq, B_wo)
    return torch.concatenate([a, b], axis=-1)
```

```python
import re

def R(kind, lo, n=1):
    return [f"{kind}{i}" for i in range(lo, lo + n)]

def rn(kind, lo, n=1):
    return f"{kind}{lo}" if n == 1 else f"{kind}[{lo}:{lo+n-1}]"

class Reg:
    def __init__(self, kind, lo, n=1):
        self.kind, self.lo, self.n = kind, lo, n
    def __str__(self):
        return rn(self.kind, self.lo, self.n)
    def regs(self):
        return R(self.kind, self.lo, self.n)
    def __getitem__(self, i):
        if isinstance(i, slice):
            start = i.start or 0
            stop = i.stop if i.stop is not None else self.n
            assert 0 <= start < stop <= self.n
            return Reg(self.kind, self.lo + start, stop - start)
        assert 0 <= i < self.n
        return Reg(self.kind, self.lo + i, 1)

def v(lo, n=1): return Reg('v', lo, n)
def a(lo, n=1): return Reg('a', lo, n)
def s(lo, n=1): return Reg('s', lo, n)

def regs_of(x):
    if isinstance(x, Reg): return x.regs()
    if isinstance(x, str):
        if x in ('vcc', 'm0', 'exec', 'scc'): return [x]
        m = re.match(r'^-?\|?([vas])(\d+)\|?$', x)
        if m: return [m.group(1) + m.group(2)]
    return []

class Ins:
    def __init__(self, text, kind, reads=(), writes=(), **kw):
        self.text = text
        self.kind = kind
        self.reads = set(reads)
        self.writes = set(writes)
        self.srcc = set(kw.get('srcc', ()))
        self.srcab = set(kw.get('srcab', ()))
        self.tag = kw.get('tag')
        self.comment = kw.get('comment')
    def __repr__(self): return self.text

def _fmt(x):
    if isinstance(x, float):
        import struct
        return "0x%08x" % struct.unpack('<I', struct.pack('<f', x))[0]
    return str(x)

def valu(op, dst, *srcs, kind='valu', extra_reads=(), extra_writes=(), mods=""):
    rd = []
    for x in srcs: rd += regs_of(x)
    wr = regs_of(dst)
    txt = f"{op} {_fmt(dst)}, " + ", ".join(_fmt(x) for x in srcs) + mods
    return Ins(txt, kind, rd + list(extra_reads), wr + list(extra_writes))

def trans(op, dst, src): return valu(op, dst, src, kind='trans')

def salu(op, dst, *srcs, scc=True):
    rd = []
    for x in srcs: rd += regs_of(x)
    wr = regs_of(dst) + (['scc'] if scc else [])
    txt = f"{op} {_fmt(dst)}" + ("" if not srcs else ", " + ", ".join(_fmt(x) for x in srcs))
    return Ins(txt, 'salu', rd, wr)

def scmp(op, a_, b_):
    return Ins(f"{op} {_fmt(a_)}, {_fmt(b_)}", 'salu', regs_of(a_) + regs_of(b_), ['scc'])

def mfma32(d, a_, b_, c):
    cr = regs_of(c)
    return Ins(f"v_mfma_f32_32x32x16_bf16 {d}, {a_}, {b_}, {c}", 'mfma32', regs_of(a_) + regs_of(b_) + cr, regs_of(d),
               srcc=cr, srcab=regs_of(a_) + regs_of(b_))

def mfma16(d, a_, b_, c):
    cr = regs_of(c)
    return Ins(f"v_mfma_f32_16x16x32_bf16 {d}, {a_}, {b_}, {c}", 'mfma16', regs_of(a_) + regs_of(b_) + cr, regs_of(d),
               srcc=cr, srcab=regs_of(a_) + regs_of(b_))

def dsr(op, dst, addr, off=0):
    assert 0 <= off < 65536, off
    return Ins(f"{op} {dst}, {addr}" + (f" offset:{off}" if off else ""), 'dsr', regs_of(addr), regs_of(dst))

def dsw(op, addr, data, off=0):
    assert 0 <= off < 65536, off
    return Ins(f"{op} {addr}, {data}" + (f" offset:{off}" if off else ""), 'dsw', regs_of(addr) + regs_of(data), [])

def bufld(op, dst, voff, srd, soff, off=0, flags="", tag=None):
    assert 0 <= off < 4096, off
    return Ins(f"{op} {dst}, {voff}, {srd}, {soff} offen" + (f" offset:{off}" if off else "") + flags, 'vmemld',
               regs_of(voff) + regs_of(srd) + regs_of(soff), regs_of(dst), tag=tag)

def bufst(op, data, voff, srd, soff, off=0, flags="", tag=None):
    assert 0 <= off < 4096, off
    return Ins(f"{op} {data}, {voff}, {srd}, {soff} offen" + (f" offset:{off}" if off else "") + flags, 'vmemst',
               regs_of(voff) + regs_of(srd) + regs_of(soff) + regs_of(data), [], tag=tag)

def dma(voff, srd, soff, off=0, flags="", tag=None):
    assert 0 <= off < 4096, off
    return Ins(f"buffer_load_dwordx4 {voff}, {srd}, {soff} offen" + (f" offset:{off}" if off else "") + " lds" + flags, 'dma',
               regs_of(voff) + regs_of(srd) + regs_of(soff) + ['m0'], [], tag=tag)

def raw(text, kind='misc', reads=(), writes=()):
    return Ins(text, kind, reads, writes)

VALU_KINDS = ('valu', 'trans')
MFMA_KINDS = ('mfma32', 'mfma16')

class Prog:
    def __init__(self):
        self.out = []
        self.lgkm = []
        self.vm = []
        self.nops_inserted = 0
        self.log = []
    def _push(self, ins):
        self.out.append(ins)
    def states_since(self, idx):
        n = 0
        for ins in self.out[idx + 1:]:
            if ins.kind in ('label', 'comment'): continue
            if ins.kind == 'nop': n += ins.nstates
            else: n += 1
        return n
    def _hazard_need(self, ins):
        need = 0
        why = None
        n = 0
        i = len(self.out) - 1
        while i >= 0 and n < 22 and len(self.out) - i < 200:
            p = self.out[i]
            if p.kind in ('label', 'comment'):
                i -= 1; continue
            req = 0
            if p.kind in MFMA_KINDS:
                passes = 8 if p.kind == 'mfma32' else 4
                if ins.kind in MFMA_KINDS:
                    if p.writes & ins.srcab: req = max(req, 12 if passes == 8 else 8)
                    if p.writes & ins.srcc:
                        if not (p.writes == ins.srcc and p.kind == ins.kind): req = max(req, 10 if passes == 8 else 6)
                    if (p.writes & ins.writes) and not (p.writes == ins.writes and p.kind == ins.kind and p.writes == ins.srcc):
                        if not (p.writes == ins.writes and p.kind == ins.kind): req = max(req, 10 if passes == 8 else 6)
                        else: req = max(req, 10 if passes == 8 else 6)
                else:
                    if p.writes & (ins.reads | ins.writes): req = max(req, 12 if passes == 8 else 8)
                    if ins.kind in VALU_KINDS and (p.srcc & ins.writes): req = max(req, 7 if passes == 8 else 3)
            elif p.kind in VALU_KINDS:
                vw = {r for r in p.writes if r[0] in 'va'}
                sw = {r for r in p.writes if r[0] == 's' or r == 'vcc'}
                sw.discard('scc')
                if ins.kind in MFMA_KINDS and (vw & ins.reads): req = max(req, 2)
                if ins.kind in MFMA_KINDS and 'exec' in p.writes: req = max(req, 4)
                if p.kind == 'trans' and ins.kind == 'valu' and (vw & ins.reads): req = max(req, 1)
                if p.kind == 'trans' and ins.kind in ('dsw', 'vmemst') and (vw & ins.reads): req = max(req, 1)
                if ins.kind in VALU_KINDS:
                    t = ins.text
                    if ('permlane' in t or 'dpp' in t or 'row_' in t) and (vw & (ins.reads | ins.writes)): req = max(req, 2)
                    if ('readlane' in t or 'readfirstlane' in t) and (vw & ins.reads): req = max(req, 1)
                    if sw & ins.reads: req = max(req, 2)
                    if ('readlane' in t or 'writelane' in t) and (sw & ins.reads): req = max(req, 4)
                if ins.kind in ('vmemld', 'vmemst', 'dma') and (sw & ins.reads): req = max(req, 5)
                if ins.kind == 'salu' and (sw & ins.reads): req = max(req, 1)
            elif p.kind == 'salu':
                if 'm0' in p.writes and ins.kind == 'dma': req = max(req, 1)
            elif p.kind == 'vmemst' or p.kind == 'dsw':
                if ins.kind in VALU_KINDS + MFMA_KINDS and (p.reads & ins.writes): req = max(req, 2)
                elif (p.reads & ins.writes): req = max(req, 1)
            if req > n and req - n > need:
                need = req - n; why = p
            if not getattr(p, 'optional', False):
                n += p.nstates if p.kind == 'nop' else 1
            i -= 1
        return need, why
    def nop(self, n):
        while n > 0:
            k = min(n, 16)
            ins = Ins(f"s_nop {k-1}", 'nop'); ins.nstates = k
            self._push(ins); n -= k
    def wait(self, vm=None, lgkm=None):
        parts = []
        if vm is not None:
            assert vm < 64
            if len(self.vm) > vm:
                parts.append(f"vmcnt({vm})")
                self.vm = self.vm[len(self.vm) - vm:] if vm > 0 else []
        if lgkm is not None:
            assert lgkm < 16
            if len(self.lgkm) > lgkm:
                parts.append(f"lgkmcnt({lgkm})")
                self.lgkm = self.lgkm[len(self.lgkm) - lgkm:] if lgkm > 0 else []
        if parts:
            self._push(Ins("s_waitcnt " + " ".join(parts), 'wait'))
    def force_wait(self, vm=None, lgkm=None):
        parts = []
        if vm is not None:
            parts.append(f"vmcnt({vm})")
            self.vm = self.vm[max(0, len(self.vm) - vm):] if vm > 0 else []
        if lgkm is not None:
            parts.append(f"lgkmcnt({lgkm})")
            self.lgkm = self.lgkm[max(0, len(self.lgkm) - lgkm):] if lgkm > 0 else []
        self._push(Ins("s_waitcnt " + " ".join(parts), 'wait'))
    def wait_tag(self, tag, lgkm=None):
        last = -1
        for i, x in enumerate(self.vm):
            if x.tag == tag: last = i
        n = None
        if last >= 0:
            n = len(self.vm) - 1 - last
            n = min(n, 63)
        self.wait(vm=n, lgkm=lgkm)
        return n
    def emit(self, ins):
        if isinstance(ins, (list, tuple)):
            for x in ins: self.emit(x)
            return
        touched = ins.reads | ins.writes
        lg = None
        for i, p in enumerate(self.lgkm):
            if p.writes & touched: lg = len(self.lgkm) - 1 - i
        vmn = None
        for i, p in enumerate(self.vm):
            if p.writes & touched: vmn = len(self.vm) - 1 - i
        if lg is not None: lg = min(lg, 15)
        if vmn is not None: vmn = min(vmn, 63)
        if lg is not None or vmn is not None:
            self.wait(vm=vmn, lgkm=lg)
        need, why = self._hazard_need(ins)
        if need > 0:
            self.nops_inserted += need
            self.log.append(f"nop {need} before [{ins.text}] due to [{why.text}]")
            self.nop(need)
        self._push(ins)
        if ins.kind in ('dsr', 'dsw'):
            self.lgkm.append(ins)
            if len(self.lgkm) > 15:
                self.log.append("lgkm overflow guard")
        if ins.kind in ('vmemld', 'vmemst', 'dma'):
            self.vm.append(ins)
    def label(self, name):
        self._push(Ins(f"{name}:", 'label'))
    def comment(self, text):
        self._push(Ins(f"; {text}", 'comment'))
    def barrier(self):
        self._push(Ins("s_barrier", 'barrier'))
    def text(self):
        lines = []
        for ins in self.out:
            if ins.kind == 'label': lines.append(ins.text)
            else: lines.append("    " + ins.text)
        return "\n".join(lines) + "\n"
    def count(self, start=0, end=None):
        from collections import Counter
        return Counter(i.kind for i in self.out[start:end])

ORDER = {'dsr': 0, 'dsw': 0, 'dma': 0, 'vmemld': 0, 'vmemst': 0}

def _flat(it):
    return list(it) if isinstance(it, (list, tuple)) else [it]

def _dep(x, y):
    for p in _flat(x):
        for q in _flat(y):
            if (p.writes & (q.reads | q.writes)) or (p.reads & q.writes): return True
            if p.kind in ('branch', 'label', 'barrier', 'wait') or q.kind in ('branch', 'label', 'barrier', 'wait'): return True
    return False

def _ismem(it):
    return any(i.kind in ORDER for i in _flat(it))

def schedule(prog, backbone, fillers):
    from collections import defaultdict
    gaps = defaultdict(list)
    n = len(backbone)
    for idx, (g, it) in enumerate(fillers):
        g = max(-1, min(g, n - 1))
        gaps[g].append(it)
    def flush(g):
        items = gaps.get(g, [])
        out = []
        for it in items:
            pos = len(out)
            if _ismem(it):
                while pos > 0 and not _ismem(out[pos - 1]) and not _dep(out[pos - 1], it):
                    pos -= 1
            out.insert(pos, it)
        for it in out:
            prog.emit(it)
    flush(-1)
    for g, m in enumerate(backbone):
        prog.emit(m)
        flush(g)

def spread(items, g0, g1):
    n = len(items)
    out = []
    span = g1 - g0 + 1
    for i, it in enumerate(items):
        out.append((g0 + (i * span) // max(n, 1), it))
    return out
```

```python
import sys, math
sys.path.insert(0, 'gen')
from asmlib import *

NAME = "concat_heads__mha_block_cached__mha_block_cached__near_ridge"
DEBUG = None
for arg in sys.argv[1:]:
    if arg.startswith('debug='): DEBUG = arg.split('=')[1]
OUTPATH = [x.split('=')[1] for x in sys.argv[1:] if x.startswith('out=')]
OUTPATH = OUTPATH[0] if OUTPATH else f"cdna_kernels/{NAME}.s"
NT = ' nt' if 'nt=1' in sys.argv[1:] else ''

BLK = 1040
SLOT = 16 * BLK
HH = 8 * BLK
LDS_Q9 = 0
LDS_P9 = 16384
LDS_ST = 20480
LDS_K = 24576
LDS_V = LDS_K + 4 * SLOT
LDS_TOTAL = LDS_V + 4 * SLOT
assert LDS_TOTAL <= 163840

CSCALE = math.log2(math.e) / 16.0
THR = 8.0

def Oacc(qt, D): return a((qt * 8 + D) * 16, 16)
def Qf(qt, s_): return v((qt * 16 + s_) * 4, 4)
def Sbuf(par, qt): return v(128 + par * 32 + qt * 16, 16)
def O9(i): return v(192 + i * 16, 16)
def pool(i): return v(224 + 4 * i, 4)
S9 = v(240, 4)
vAK, vAK16, vAV, vAQ9, vAP9w, vDMA = v(244), v(245), v(246), v(247), v(248), v(249)
vNegm = [v(250), v(251)]
vL = [v(252), v(253)]
vM9, vL9 = v(254), v(255)
def bpool(par, i):
    return Sbuf(par, i >> 1)[8 + 4 * (i & 1): 12 + 4 * (i & 1)]

sK, sV, sW, sX, sWS = s(8, 4), s(12, 4), s(16, 4), s(20, 4), s(24, 4)
sWave, sKH, sQH = s(28), s(29), s(30)
sC = s(31)
sKoff, sVoff = s(32), s(33)
sWL = s(34)
sXoff = [s(35), s(36), s(37)]
sWoff = s(38)
sTmp, sTmp2 = s(39), s(40)
sQH8192 = s(41)
sV9off = s(42)
sLoop = s(43)
sRet = s(44, 2)
sThr = s(46)
sH, sB, sM = s(47), s(48), s(49)
sWO = s(52, 4)
sPart = s(56)
sOwnN = s(57)
sPtr = s(60, 26)

P = Prog()
E = P.emit

def kslot_imm(slot, s_): return slot * SLOT + (s_ >> 3) * HH + ((s_ >> 1) & 3) * 256 + (s_ & 1) * 32
def k16_imm(slot, s_): return slot * SLOT + (s_ >> 2) * HH + (s_ & 3) * 256
def dtile_off(D): return (D >> 2) * HH + (D & 3) * 256
def v_imm(slot, u, i, D): return slot * SLOT + (4 * u + 2 * i) * BLK + dtile_off(D)
def w_imm(slot, u, i, D): return slot * SLOT + (4 * u + i) * BLK + dtile_off(D)

def tr_pair(dst, addr, off0, off1):
    return [dsr("ds_read_b64_tr_b16", dst[0:2], addr, off0), dsr("ds_read_b64_tr_b16", dst[2:4], addr, off1)]

def dma_kv(srd, soff, ldsbase, tag):
    out = []
    for i in range(4):
        hh = i & 1
        imm = (i >> 1) * 2048 + hh * 256
        m0c = ldsbase + ((i >> 1) + 8 * hh) * BLK - imm
        assert m0c >= 0
        out.append([salu("s_add_u32", "m0", sWL, m0c), dma(vDMA, srd, soff, imm, flags=NT, tag=tag)])
    return out

P.label(f"{NAME}_kernel")
E(scmp("s_cmp_ge_u32", s(2), 256))
E(raw("s_cbranch_scc1 L_exit", 'branch'))
E(raw(f"s_load_dwordx16 s[60:75], s[0:1], 0", 'misc', [], R('s', 60, 16)))
E(raw(f"s_load_dwordx8 s[76:83], s[0:1], 64", 'misc', [], R('s', 76, 8)))
E(raw(f"s_load_dwordx2 s[84:85], s[0:1], 96", 'misc', [], R('s', 84, 2)))
vl, vt0, vt1, vt2, vt3 = v(100), v(101), v(102), v(103), v(104)
E(valu("v_and_b32", vl, 63, v(0)))
E(valu("v_lshrrev_b32", vt0, 6, v(0)))
E(raw("s_nop 1", 'nop')); P.out[-1].nstates = 2
E(valu("v_readfirstlane_b32", sWave, vt0))
E(salu("s_and_b32", sTmp, s(2), 7))
E(salu("s_lshr_b32", sM, sTmp, 2))
E(salu("s_and_b32", sTmp, sTmp, 3))
E(salu("s_lshl_b32", sH, sTmp, 2))
E(salu("s_lshr_b32", sTmp, s(2), 3))
E(salu("s_and_b32", sTmp2, sTmp, 3))
E(salu("s_add_u32", sH, sH, sTmp2))
E(salu("s_lshr_b32", sB, sTmp, 2))
E(salu("s_lshr_b32", sKH, sWave, 1))
E(salu("s_and_b32", sQH, sWave, 1))
E(salu("s_lshl_b32", sQH8192, sQH, 13))
E(salu("s_mul_i32", sWL, sWave, 2 * BLK))
E(salu("s_mov_b32", sC, CSCALE, scc=False))
E(salu("s_mov_b32", sThr, THR, scc=False))
E(salu("s_mul_i32", sV9off, sKH, HH))
E(salu("s_lshl_b32", sTmp, sQH, 9))
E(salu("s_add_u32", sV9off, sV9off, sTmp))
E(raw("s_waitcnt lgkmcnt(0)", 'wait'))
E(scmp("s_cmp_eq_u32", sM, 0))
def sel(dst, i):
    E(Ins(f"s_cselect_b32 {dst[0]}, s{60+2*i}, s{70+2*i}", 'salu', ['scc'], dst[0].regs()))
    E(Ins(f"s_cselect_b32 {dst[1]}, s{61+2*i}, s{71+2*i}", 'salu', ['scc'], dst[1].regs()))
sel(sX, 0); sel(sK, 1); sel(sV, 2); sel(sW, 3); sel(sWO, 4)
for srd, nbytes in ((sX, 8 * 288 * 448 * 2), (sK, 8 * 16 * 1024 * 256 * 2), (sV, 8 * 16 * 1024 * 256 * 2),
                    (sW, 448 * 4096 * 2), (sWO, 4096 * 448 * 2)):
    E(salu("s_mov_b32", srd[2], nbytes, scc=False))
    E(salu("s_mov_b32", srd[3], "0x00020000", scc=False))
E(salu("s_mov_b32", sWS[0], s(84), scc=False))
E(salu("s_mov_b32", sWS[1], s(85), scc=False))
E(salu("s_mov_b32", sWS[2], 287244288, scc=False))
E(salu("s_mov_b32", sWS[3], "0x00020000", scc=False))
E(salu("s_lshl_b32", sTmp, sB, 4))
E(salu("s_add_u32", sTmp, sTmp, sH))
E(salu("s_lshl_b32", sKoff, sTmp, 19))
E(salu("s_lshl_b32", sTmp, sWave, 12))
E(salu("s_add_u32", sKoff, sKoff, sTmp))
E(salu("s_mov_b32", sVoff, sKoff, scc=False))
E(salu("s_mul_i32", sTmp, sB, 288))
E(salu("s_lshl_b32", sTmp2, sWave, 6))
E(salu("s_add_u32", sTmp2, sTmp2, sTmp))
E(salu("s_mul_i32", sXoff[0], sTmp2, 896))
E(salu("s_add_u32", sXoff[1], sXoff[0], 32 * 896))
E(salu("s_add_u32", sTmp, sTmp, 256))
E(salu("s_mul_i32", sXoff[2], sTmp, 896))
E(salu("s_lshl_b32", sWoff, sWave, 16))
E(salu("s_lshl_b32", sTmp, sH, 9))
E(salu("s_add_u32", sWoff, sWoff, sTmp))

vDMAw, vX, vAWk, vAWv, vAW9k, vAW9v = v(105), v(106), v(107), v(108), v(109), v(110)
E(valu("v_bfe_u32", vt0, vl, 2, 2))
E(valu("v_lshrrev_b32", vt1, 4, vl))
E(valu("v_and_b32", vt2, 3, vl))
E(valu("v_lshlrev_b32", vt3, 6, vt1))
E(valu("v_lshl_add_u32", vt3, vt2, 4, vt3))
E(valu("v_lshl_add_u32", vDMA, vt0, 9, vt3))
E(valu("v_lshl_add_u32", vDMAw, vt0, 13, vt3))
def dma_w(j, ldsbase):
    out = []
    for i in range(4):
        hh = i & 1
        imm = hh * 256
        m0c = ldsbase + ((i >> 1) + 8 * hh) * BLK - imm
        g = []
        if hh == 0:
            g.append(salu("s_add_u32", sTmp, sWoff, (32 * j + 4 * (i >> 1)) * 8192))
        g += [salu("s_add_u32", "m0", sWL, m0c), dma(vDMAw, sW, sTmp, imm, tag=f"W{j}")]
        out.append(g)
    return out
def wslot_base(j): return (LDS_K + j * SLOT) if j < 4 else (LDS_V + ((j - 4) % 4) * SLOT)
E(valu("v_and_b32", vX, 31, vl))
E(valu("v_mul_u32_u24", vX, 896, vX))
E(valu("v_lshrrev_b32", v(111), 5, vl))
E(valu("v_lshl_add_u32", vX, v(111), 4, vX))
def xbuf(j, qt, u): return v((j % 4) * 24 + (qt * 2 + u) * 4, 4)
def xloads(j):
    return [bufld("buffer_load_dwordx4", xbuf(j, qt, u), vX, sX, sXoff[qt], 64 * j + 32 * u, tag=f"X{j}")
            for qt in range(3) for u in range(2)]
for j in range(4):
    E(dma_w(j, wslot_base(j)))
    E(xloads(j))
for j in range(4, 8):
    E(dma_w(j, wslot_base(j)))
vhf = v(111)
E(valu("v_bfe_u32", vt3, vl, 2, 3))
E(valu("v_mul_u32_u24", vAK, BLK, vt3))
E(valu("v_lshl_add_u32", vAK, vt2, 6, vAK))
E(valu("v_lshl_add_u32", vAK, vhf, 4, vAK))
E(valu("v_add_u32", vAK, LDS_K, vAK))
E(valu("v_mul_u32_u24", vAK16, BLK, vt0))
E(valu("v_lshl_add_u32", vAK16, vt2, 6, vAK16))
E(valu("v_lshl_add_u32", vAK16, vt1, 4, vAK16))
E(salu("s_mul_i32", sTmp, sKH, 4 * BLK))
E(salu("s_add_u32", sTmp, sTmp, LDS_K))
E(valu("v_add_u32", vAK16, sTmp, vAK16))
E(valu("v_and_b32", vt3, 1, vt1))
E(valu("v_lshlrev_b32", v(112), 6, vt0))
E(valu("v_lshl_add_u32", v(112), vt3, 5, v(112)))
E(valu("v_mul_u32_u24", vAV, BLK, vhf))
E(valu("v_add_u32", vAV, vAV, v(112)))
E(valu("v_lshl_add_u32", vAV, vt2, 3, vAV))
E(valu("v_add_u32", vAV, LDS_V, vAV))
E(valu("v_and_b32", v(113), 1, vt2))
E(valu("v_lshrrev_b32", v(114), 1, vt2))
E(valu("v_lshl_add_u32", v(113), v(113), 1, v(114)))
E(valu("v_mul_u32_u24", vAWk, 2 * BLK, vhf))
E(valu("v_add_u32", vAWk, vAWk, v(112)))
E(valu("v_lshl_add_u32", vAWk, v(113), 3, vAWk))
E(valu("v_add_u32", vAWv, LDS_V, vAWk))
E(valu("v_add_u32", vAWk, LDS_K, vAWk))
E(valu("v_add_u32", vAW9k, sV9off, vAWk))
E(valu("v_add_u32", vAW9v, sV9off, vAWv))
E(valu("v_lshlrev_b32", vAQ9, 4, vl))
E(valu("v_add_u32", vAQ9, sQH8192, vAQ9))
E(valu("v_and_b32", v(114), 15, vl))
E(valu("v_lshl_add_u32", v(114), vt3, 5, v(114)))
E(valu("v_lshlrev_b32", vAP9w, 4, v(114)))
E(valu("v_lshl_add_u32", vAP9w, vhf, 3, vAP9w))
E(salu("s_lshl_b32", sTmp, sKH, 10))
E(salu("s_lshl_b32", sTmp2, sQH, 8))
E(salu("s_add_u32", sTmp, sTmp, sTmp2))
E(valu("v_add_u32", vAP9w, sTmp, vAP9w))
vQ9w = v(115)
E(valu("v_and_b32", vQ9w, 15, vl))
E(valu("v_lshl_add_u32", vQ9w, vhf, 4, vQ9w))
E(valu("v_lshlrev_b32", vQ9w, 4, vQ9w))
E(valu("v_lshl_add_u32", vQ9w, vt3, 13, vQ9w))
E(salu("s_lshl_b32", sTmp, sWave, 11))
E(valu("v_add_u32", vQ9w, sTmp, vQ9w))
E(valu("v_mov_b32", vL[0], 0)); E(valu("v_mov_b32", vL[1], 0)); E(valu("v_mov_b32", vL9, 0))
E(valu("v_mov_b32", vNegm[0], 0)); E(valu("v_mov_b32", vNegm[1], 0))
E(valu("v_mov_b32", vM9, -1.0e30))

def qpool(i): return v(128 + 4 * i, 4)
NQP = 8
def wfrag_reads(j, idx, dst):
    slot = j if j < 4 else (j - 4) % 4
    if idx < 16:
        u, D = idx >> 3, idx & 7
        ad = vAWk if j < 4 else vAWv
        return tr_pair(dst, ad, w_imm(slot, u, 0, D), w_imm(slot, u, 1, D))
    u, i9 = (idx - 16) >> 1, (idx - 16) & 1
    ad = vAW9k if j < 4 else vAW9v
    return tr_pair(dst, ad, w_imm(slot, u, 0, i9), w_imm(slot, u, 1, i9))

QORD = list(range(0, 8)) + [16, 17] + list(range(8, 16)) + [18, 19]
P.wait_tag("W1")
P.barrier()
fcount = 0
PRE = 6
pend = []
for k in range(PRE):
    E(wfrag_reads(0, QORD[k], qpool(k % NQP)))
for j in range(14):
    bb = []
    first_mfma_of_frag = []
    last_mfma_of_frag = []
    for k, idx in enumerate(QORD):
        fr = qpool((fcount + k) % NQP)
        first_mfma_of_frag.append(len(bb))
        if idx < 16:
            u, D = idx >> 3, idx & 7
            for qt in range(2):
                c = Oacc(qt, D) if (j > 0 or u > 0) else 0
                bb.append(mfma32(Oacc(qt, D), fr, xbuf(j, qt, u), c))
        else:
            u, i9 = (idx - 16) >> 1, (idx - 16) & 1
            c = O9(i9) if (j > 0 or u > 0) else 0
            bb.append(mfma32(O9(i9), fr, xbuf(j, 2, u), c))
        last_mfma_of_frag.append(len(bb) - 1)
    fl = []
    for k in range(20):
        kk = k + PRE
        if kk < 20: jj, id2 = j, QORD[kk]
        else: jj, id2 = j + 1, QORD[kk - 20]
        if jj > 13: continue
        fl.append((first_mfma_of_frag[k], wfrag_reads(jj, id2, qpool((fcount + kk) % NQP))))
    extra = []
    if 1 <= j <= 4:
        extra += dma_kv(sK, sKoff, LDS_K + (j - 1) * SLOT, f"K{j-1}")
        extra.append(salu("s_add_u32", sKoff, sKoff, 16384))
    elif 5 <= j <= 10:
        extra += dma_w(j + 3, wslot_base(j + 3))
    elif j >= 11:
        t = j - 11
        extra += dma_kv(sV, sVoff, LDS_V + ((t + 2) % 4) * SLOT, f"V{t}")
        extra.append(salu("s_add_u32", sVoff, sVoff, 16384))
    if 1 <= j <= 10:
        extra += xloads(j + 3)
    fl += spread(extra, 1, 20)
    schedule(P, bb, fl)
    fcount += 20
    if j < 13:
        if j + 2 <= 13: P.wait_tag(f"W{j+2}", lgkm=0)
        else: P.wait(lgkm=0)
        P.barrier()

tq = v(128, 8)
for i in range(2):
    for a1 in range(2):
        dst = v(128 + (i * 2 + a1) * 4, 4)
        for k in range(4):
            E(valu("v_cvt_pk_bf16_f32", dst[k], O9(i)[8 * a1 + 2 * k], O9(i)[8 * a1 + 2 * k + 1]))
        E(dsw("ds_write_b128", vQ9w, dst, i * 1024 + a1 * 512))
for i in range(2):
    for k in range(16):
        E(valu("v_mov_b32", O9(i)[k], 0))
tmpc = v(160, 16)
for qt in range(2):
    for D in range(8):
        acc = Oacc(qt, D)
        for k in range(16):
            E(valu("v_accvgpr_read_b32", tmpc[k], acc[k]))
        for k in range(16):
            E(valu("v_accvgpr_write_b32", acc[k], 0))
        for a1 in range(2):
            for k in range(4):
                E(valu("v_cvt_pk_bf16_f32", Qf(qt, 2 * D + a1)[k], tmpc[8 * a1 + 2 * k], tmpc[8 * a1 + 2 * k + 1]))

if DEBUG == 'q':
    vd = v(160)
    E(valu("v_mbcnt_lo_u32_b32", vd, -1, 0)); E(valu("v_mbcnt_hi_u32_b32", vd, -1, vd))
    E(valu("v_lshlrev_b32", vd, 4, vd))
    E(salu("s_lshl_b32", sTmp, s(2), 2)); E(salu("s_add_u32", sTmp, sTmp, sWave)); E(salu("s_lshl_b32", sTmp, sTmp, 15))
    for qt in range(2):
        for s_ in range(16):
            E(bufst("buffer_store_dwordx4", Qf(qt, s_), vd, sWS, sTmp, 0))
            E(salu("s_add_u32", sTmp, sTmp, 1024))
    P.force_wait(vm=0, lgkm=0)
    E(raw("s_endpgm", 'branch'))

P.wait_tag("K1", lgkm=0)
P.barrier()

def s9_mfmas(t):
    out = []
    for s_ in range(8):
        ka, qa = pool((2 * s_) % 4), pool((2 * s_ + 1) % 4)
        rd = [dsr("ds_read_b128", ka, vAK16, k16_imm(t % 4, s_)), dsr("ds_read_b128", qa, vAQ9, LDS_Q9 + s_ * 1024)]
        out.append((rd, mfma16(S9, ka, qa, S9 if s_ > 0 else 0)))
    return out

def s9_max_write(t, T):
    return [valu("v_max3_f32", T[2], S9[0], S9[1], S9[2]),
            valu("v_max_f32", T[2], T[2], S9[3]),
            valu("v_mov_b32", T[3], T[2]),
            Ins(f"v_permlane32_swap_b32 {T[2]}, {T[3]}", 'valu', T[2].regs() + T[3].regs(), T[2].regs() + T[3].regs()),
            valu("v_max_f32", T[2], T[2], T[3]),
            valu("v_mov_b32", T[3], T[2]),
            Ins(f"v_permlane16_swap_b32 {T[2]}, {T[3]}", 'valu', T[2].regs() + T[3].regs(), T[2].regs() + T[3].regs()),
            valu("v_max_f32", T[2], T[2], T[3]),
            dsw("ds_write_b32", vAP9w, T[2], LDS_ST + (t % 2) * 2048)]

def mx_read(t, T):
    o = (LDS_ST + (t % 2) * 2048) // 256
    return [valu("v_and_b32", T[0], "0xfffffbff", vAP9w),
            Ins(f"ds_read2st64_b32 {T[2:4]}, {T[0]} offset0:{o} offset1:{o+4}", 'dsr', T[0].regs(), T[2:4].regs())]

def p9_compute(t, T):
    par = t % 2
    L = [valu("v_max_f32", T[2], T[2], T[3]),
         valu("v_mul_f32", T[2], sC, T[2]),
         valu("v_add_f32", T[3], sThr, vM9),
         valu("v_cmp_gt_f32", "vcc", T[2], T[3]),
         valu("v_cndmask_b32", T[3], vM9, T[2], "vcc"),
         valu("v_sub_f32", T[1], vM9, T[3]),
         valu("v_mov_b32", vM9, T[3]),
         trans("v_exp_f32", T[1], T[1])]
    for k in range(4):
        L.append(valu("v_fma_f32", S9[k], S9[k], sC, f"-{vM9}"))
    for k in range(4):
        L.append(trans("v_exp_f32", S9[k], S9[k]))
    L.append(valu("v_fma_f32", vL9, vL9, T[1], S9[0]))
    for k in range(1, 4):
        L.append(valu("v_add_f32", vL9, vL9, S9[k]))
    L.append(valu("v_cvt_pk_bf16_f32", S9[0], S9[0], S9[1]))
    L.append(valu("v_cvt_pk_bf16_f32", S9[1], S9[2], S9[3]))
    L.append(dsw("ds_write_b64", vAP9w, S9[0:2], LDS_P9 + par * 2048))
    L.append(dsw("ds_write_b32", vAP9w, T[1], LDS_ST + par * 2048 + 4))
    return L

def kread(t, s_): return dsr("ds_read_b128", pool(s_ % 4), vAK, kslot_imm(t % 4, s_))
def vslot(t): return (t + 2) % 4
def vread(t, f, dst):
    D, u = f >> 1, f & 1
    return tr_pair(dst, vAV, v_imm(vslot(t), u, 0, D), v_imm(vslot(t), u, 1, D))

def exp_stream(t):
    L = []
    for qt in range(2):
        Sx = Sbuf(t % 2, qt)
        for g in range(4):
            for k in range(4): L.append(trans("v_exp_f32", Sx[4 * g + k], Sx[4 * g + k]))
            for k in range(4): L.append(valu("v_add_f32", vL[qt], vL[qt], Sx[4 * g + k]))
            L.append(valu("v_cvt_pk_bf16_f32", Sx[2 * g], Sx[4 * g], Sx[4 * g + 1]))
            L.append(valu("v_cvt_pk_bf16_f32", Sx[2 * g + 1], Sx[4 * g + 2], Sx[4 * g + 3]))
    return L

def fma_stream(t):
    L = []
    for qt in range(2):
        Sx = Sbuf(t % 2, qt)
        for k in range(16):
            L.append(valu("v_fma_f32", Sx[k], Sx[k], sC, vNegm[qt]))
    return L

def max_stream(t, acc):
    xs = [Sbuf(t % 2, qt)[k] for qt in range(2) for k in range(16)]
    L = [valu("v_max3_f32", acc, xs[0], xs[1], xs[2])]
    k = 3
    while k < 32:
        if k + 1 < 32:
            L.append(valu("v_max3_f32", acc, acc, xs[k], xs[k + 1])); k += 2
        else:
            L.append(valu("v_max_f32", acc, acc, xs[k])); k += 1
    return L

def qk_backbone(t):
    bb = []
    for s_ in range(16):
        for qt in range(2):
            Sn = Sbuf(t % 2, qt)
            bb.append(mfma32(Sn, pool(s_ % 4), Qf(qt, s_), Sn if s_ > 0 else 0))
    return bb

def phaseA(t, do_qk, dmas):
    P.comment(f"---- A({t})")
    ex = exp_stream(t)
    vpre = [vread(t, f, bpool(t % 2, f)) for f in range(3)]
    if do_qk:
        bb = qk_backbone(t + 1)
        fl = []
        for s_ in range(4, 16):
            fl.append((2 * (s_ - 4) + 1, kread(t + 1, s_)))
        fl += spread(ex, 0, 26)
        fl += spread(dmas, 2, 24)
        fl += [(27, vpre[0]), (28, vpre[1]), (29, vpre[2])]
        schedule(P, bb, fl)
    else:
        E(dmas)
        E(ex)
        E(vpre)

lblctr = [0]
def phaseB(t, do_pv=True, do_p9=True, do_s9=True, do_fma=True, init=False, kpre=True):
    P.comment(f"---- B({t})")
    par = t % 2
    T = bpool(par, 3)
    main = []
    if do_pv:
        for f in range(16):
            D, u = f >> 1, f & 1
            for qt in range(2):
                Pf = Sbuf(par, qt)[4 * u: 4 * u + 4]
                main.append(mfma32(Oacc(qt, D), bpool(par, f % 3), Pf, Oacc(qt, D)))
    ins_after = {}
    fl_main = []
    if do_pv:
        for f in range(3, 16):
            fl_main.append((2 * (f - 3) + 1, vread(t, f, bpool(par, f % 3))))
        lblctr[0] += 1
        lb = f"L_skip9_{lblctr[0]}"
        g1 = [valu("v_subrev_u32", T[0], sQH8192, vAQ9),
              dsr("ds_read_b32", T[1], T[0], LDS_ST + par * 2048 + 4),
              dsr("ds_read_b128", pool(0), T[0], LDS_P9 + par * 2048),
              dsr("ds_read_b128", pool(1), T[0], LDS_P9 + par * 2048 + 1024)]
        fl_main.append((-1, g1))
        if do_p9: fl_main.append((0, mx_read(t + 1, T)))
        v9a = [valu("v_add_u32", T[0], sV9off, vAV)]
        v9a += tr_pair(pool(2), T[0], v_imm(vslot(t), 0, 0, 0), v_imm(vslot(t), 0, 1, 0))
        v9a += tr_pair(pool(3), T[0], v_imm(vslot(t), 0, 0, 1), v_imm(vslot(t), 0, 1, 1))
        fl_main.append((1, v9a))
        chk = [valu("v_cmp_neq_f32", "vcc", 1.0, T[1]), raw(f"s_cbranch_vccz {lb}", 'branch', ['vcc'])]
        for i in range(2):
            for k in range(16):
                x = valu("v_mul_f32", O9(i)[k], O9(i)[k], T[1]); x.optional = True
                chk.append(x)
        chk.append(Ins(f"{lb}:", 'label'))
        fl_main.append((3, chk))
        ins_after[4] = [mfma32(O9(0), pool(2), pool(0), O9(0))]
        ins_after[5] = [mfma32(O9(1), pool(3), pool(0), O9(1))]
        fl_main.append((5.5, tr_pair(pool(2), T[0], v_imm(vslot(t), 1, 0, 0), v_imm(vslot(t), 1, 1, 0)) +
                        tr_pair(pool(3), T[0], v_imm(vslot(t), 1, 0, 1), v_imm(vslot(t), 1, 1, 1))))
        ins_after[9] = [mfma32(O9(0), pool(2), pool(1), O9(0))]
        ins_after[10] = [mfma32(O9(1), pool(3), pool(1), O9(1))]
        if do_p9:
            fl_main += spread(p9_compute(t + 1, T), 4, 9)
        if do_s9:
            s9 = s9_mfmas(t + 2)
            pos = [13, 15, 17, 19, 21, 23, 24, 25]
            for k, (rd, mf) in enumerate(s9):
                ins_after.setdefault(pos[k], []).append(mf)
                if k < 2: fl_main.append((10.5, rd))
                else: fl_main.append((pos[k - 2] + 0.5, rd))
            fl_main += spread(s9_max_write(t + 2, T), 28, 30)
        if do_fma:
            fl_main += spread(fma_stream(t + 1), 2, 20)
            fl_main += spread(max_stream(t + 1, T[1]), 12, 27)
        if kpre:
            for s_ in range(4):
                fl_main.append((26 + s_ if s_ else 25.5, kread(t + 2, s_)))
        bb = []; idxmap = {}; idxmap_half = {}
        for m, mf in enumerate(main):
            bb.append(mf); idxmap[m] = len(bb) - 1
            for x in ins_after.get(m, []): bb.append(x)
            idxmap_half[m] = len(bb) - 1
        fl = []
        for g, it in fl_main:
            if g < 0: fl.append((-1, it))
            elif g != int(g): fl.append((idxmap_half[int(g)], it))
            else: fl.append((idxmap[g], it))
        fl.sort(key=lambda x: x[0])
        schedule(P, bb, fl)
    else:
        if do_p9:
            E(mx_read(t + 1, T)); E(p9_compute(t + 1, T))
        if do_fma: E(fma_stream(t + 1))
        if do_s9:
            for rd, mf in s9_mfmas(t + 2):
                E(rd); E(mf)
            E(s9_max_write(t + 2, T))
        if kpre:
            for s_ in range(4): E(kread(t + 2, s_))
    if do_fma:
        if init:
            for qt in range(2):
                xs = Sbuf((t + 1) % 2, qt)
                E(valu("v_max3_f32", T[0], xs[0], xs[1], xs[2]))
                for k in range(3, 15, 2): E(valu("v_max3_f32", T[0], T[0], xs[k], xs[k + 1]))
                E(valu("v_max_f32", T[0], T[0], xs[15]))
                E(valu("v_mov_b32", T[1], T[0]))
                E(Ins(f"v_permlane32_swap_b32 {T[0]}, {T[1]}", 'valu', T[0].regs() + T[1].regs(), T[0].regs() + T[1].regs()))
                E(valu("v_max_f32", T[0], T[0], T[1]))
                for k in range(16): E(valu("v_sub_f32", xs[k], xs[k], T[0]))
                E(valu("v_sub_f32", vNegm[qt], vNegm[qt], T[0]))
        else:
            lblctr[0] += 1
            lb = f"L_norare_{lblctr[0]}"
            E(valu("v_cmp_lt_f32", "vcc", sThr, T[1]))
            E(raw(f"s_cbranch_vccz {lb}", 'branch', ['vcc']))
            x = raw(f"s_call_b64 {sRet}, L_rare{par}", 'branch', [], sRet.regs()); x.optional = True
            E(x)
            P.label(lb)

def end_iter(vm):
    P.force_wait(vm=vm, lgkm=0)
    P.barrier()

Tp = bpool(1, 3)
for rd, mf in s9_mfmas(0):
    E(rd); E(mf)
E(s9_max_write(0, Tp))
for s_ in range(4): E(kread(0, s_))
bb = qk_backbone(0)
schedule(P, bb, [(2 * (s_ - 4) + 1, kread(0, s_)) for s_ in range(4, 16)])
P.wait_tag("K2", lgkm=0)
P.barrier()
phaseB(-1, do_pv=False, init=True)
P.wait_tag("V0", lgkm=0)
P.barrier()

def kv_dmas(t, k=True, vv=True):
    d = []
    if k:
        d += dma_kv(sK, sKoff, LDS_K + (t % 4) * SLOT, f"K{t+4}")
        d.append(salu("s_add_u32", sKoff, sKoff, 16384))
    if vv:
        d += dma_kv(sV, sVoff, LDS_V + vslot(t + 3) * SLOT, f"V{t+3}")
        d.append(salu("s_add_u32", sVoff, sVoff, 16384))
    return d

E(salu("s_mov_b32", sLoop, 7, scc=False))
P._push(Ins(".p2align 6", 'comment')); P.out[-1].text = ".p2align 6"
P.label("L_loop")
loop_start = len(P.out)
for t in range(4):
    phaseA(t, True, kv_dmas(t))
    phaseB(t)
    if t == 3:
        E(salu("s_sub_u32", sLoop, sLoop, 1))
        E(scmp("s_cmp_lg_u32", sLoop, 0))
    end_iter(12)
E(raw("s_cbranch_scc1 L_loop", 'branch', ['scc']))
loop_end = len(P.out)
import copy
newvm = []
for x in P.vm:
    y = copy.copy(x)
    if y.tag and y.tag[0] in 'KV' and y.tag[1:].isdigit(): y.tag = y.tag[0] + str(int(y.tag[1:]) + 24)
    newvm.append(y)
P.vm = newvm

vDMAo = vDMA
def dma_wo(p, i):
    base = (LDS_K if p % 2 == 0 else LDS_V) + i * SLOT
    out = []
    for k in range(4):
        imm = 0
        g = [salu("s_add_u32", sTmp, sWoff, (64 * i + 4 * k) * 896 + 256 * p),
             salu("s_add_u32", "m0", sWL, base + k * BLK),
             dma(vDMAo, sWO, sTmp, 0, tag=f"WO{p}")]
        out.append(g)
    return out

d28 = kv_dmas(28, k=False, vv=True)
sw = [valu("v_mbcnt_lo_u32_b32", vDMAo, -1, 0), valu("v_mbcnt_hi_u32_b32", vDMAo, -1, vDMAo)]
phaseA(28, True, d28)
phaseB(28)
T = bpool(0, 3)
E(valu("v_lshrrev_b32", T[0], 9, vDMA))
E(valu("v_mul_u32_u24", T[0], 384, T[0]))
E(valu("v_add_u32", vDMAo, vDMA, T[0]))
E(salu("s_lshl_b32", sTmp, sH, 8))
E(salu("s_lshl_b32", sTmp2, sWave, 4))
E(salu("s_add_u32", sTmp, sTmp, sTmp2))
E(salu("s_mul_i32", sWoff, sTmp, 896))
E(salu("s_lshl_b32", sWL, sWL, 1))
end_iter(8)
phaseA(29, True, dma_wo(0, 0) + dma_wo(0, 1) + dma_wo(1, vslot(28)))
phaseB(29)
P.wait_tag("V30", lgkm=0); P.barrier()
phaseA(30, True, dma_wo(0, 2) + dma_wo(1, vslot(29)))
phaseB(30, do_s9=False, kpre=False)
P.wait_tag("V31", lgkm=0); P.barrier()
phaseA(31, False, dma_wo(0, 3) + dma_wo(1, vslot(30)))
phaseB(31, do_p9=False, do_s9=False, do_fma=False, kpre=False)

T = v(128, 8)
E(valu("v_mov_b32", T[0], vL9))
E(Ins(f"v_permlane32_swap_b32 {vL9}, {T[0]}", 'valu', vL9.regs() + T[0].regs(), vL9.regs() + T[0].regs()))
E(valu("v_add_f32", vL9, vL9, T[0]))
E(valu("v_mov_b32", T[0], vL9))
E(Ins(f"v_permlane16_swap_b32 {vL9}, {T[0]}", 'valu', vL9.regs() + T[0].regs(), vL9.regs() + T[0].regs()))
E(valu("v_add_f32", vL9, vL9, T[0]))
E(dsw("ds_write_b32", vAP9w, vL9, LDS_ST))
for qt in range(2):
    E(valu("v_mov_b32", T[0], vL[qt]))
    E(Ins(f"v_permlane32_swap_b32 {vL[qt]}, {T[0]}", 'valu', vL[qt].regs() + T[0].regs(), vL[qt].regs() + T[0].regs()))
    E(valu("v_add_f32", vL[qt], vL[qt], T[0]))
    E(trans("v_rcp_f32", vL[qt], vL[qt]))
P.wait(lgkm=0)
P.barrier()
E(dma_wo(1, vslot(31)))
vLin = vAK16
E(valu("v_subrev_u32", vLin, sQH8192, vAQ9))
E(dsr("ds_read_b32", T[0], vLin, LDS_ST))
E(dsr("ds_read_b32", T[1], vLin, LDS_ST + 1024))
E(valu("v_add_f32", T[0], T[0], T[1]))
E(trans("v_rcp_f32", T[0], T[0]))
E(salu("s_lshl_b32", sTmp, sWave, 12))
E(valu("v_add_u32", T[1], sTmp, vLin))
for i in range(2):
    for k in range(16): E(valu("v_mul_f32", O9(i)[k], O9(i)[k], T[0]))
    for u in range(2):
        dst = v(136 + (i * 2 + u) * 4, 4)
        for k in range(4):
            E(valu("v_cvt_pk_bf16_f32", dst[k], O9(i)[8 * u + 2 * k], O9(i)[8 * u + 2 * k + 1]))
        E(dsw("ds_write_b128", T[1], dst, LDS_Q9 + (i * 2 + u) * 1024))
tmpc = v(160, 16)
for qt in range(2):
    for D in range(8):
        acc = Oacc(qt, D)
        for k in range(16): E(valu("v_accvgpr_read_b32", tmpc[k], acc[k]))
        for k in range(16): E(valu("v_mul_f32", tmpc[k], tmpc[k], vL[qt]))
        for u in range(2):
            for k in range(4):
                E(valu("v_cvt_pk_bf16_f32", Qf(qt, 2 * D + u)[k], tmpc[8 * u + 2 * k], tmpc[8 * u + 2 * k + 1]))

if DEBUG == 'o':
    P.wait(lgkm=0); P.barrier()
    vd = v(160)
    E(salu("s_lshl_b32", sTmp, s(2), 2)); E(salu("s_add_u32", sTmp, sTmp, sWave)); E(salu("s_mul_i32", sTmp, sTmp, 36 * 1024))
    for qt in range(2):
        for s_ in range(16):
            E(bufst("buffer_store_dwordx4", Qf(qt, s_), vLin, sWS, sTmp, 0))
            E(salu("s_add_u32", sTmp, sTmp, 1024))
    for k in range(4):
        E(bufst("buffer_store_dwordx4", v(136 + 4 * k, 4), vLin, sWS, sTmp, 0))
        E(salu("s_add_u32", sTmp, sTmp, 1024))
    P.wait(vm=0)
    E(raw("s_endpgm", 'branch'))

vAOk, vAOv, vAO9k, vAO9v = vAK, vAV, vAQ9, vAP9w
lane = T[2]
E(valu("v_lshrrev_b32", lane, 4, vLin))
E(valu("v_and_b32", T[3], 3, lane))
E(valu("v_and_b32", T[4], 1, T[3]))
E(valu("v_lshrrev_b32", T[5], 1, T[3]))
E(valu("v_lshl_add_u32", T[4], T[4], 1, T[5]))
E(valu("v_sub_u32", T[4], T[4], T[3]))
E(valu("v_lshlrev_b32", T[4], 3, T[4]))
E(valu("v_add_u32", vAOv, vAV, T[4]))
E(valu("v_subrev_u32", vAOk, LDS_V - LDS_K, vAOv))
E(salu("s_lshl_b32", sOwnN, sWave, 8))
E(valu("v_add_u32", vAO9k, sOwnN, vAOk))
E(valu("v_add_u32", vAO9v, sOwnN, vAOv))
E(salu("s_lshl_b32", sTmp, sM, 3)); E(salu("s_add_u32", sTmp, sTmp, sB))
E(salu("s_mul_i32", sPart, sTmp, 9 * 14 * 2 * 16 * 1024))
E(salu("s_lshl_b32", sTmp, sH, 10)); E(salu("s_add_u32", sPart, sPart, sTmp))
QSTR = 14 * 2 * 16 * 1024
NSTR = 2 * 16 * 1024
ASTR = 16 * 1024
sPq = [s(58), s(59), s(50)]
E(salu("s_mul_i32", sTmp, sWave, 2 * QSTR))
E(salu("s_add_u32", sPq[0], sPart, sTmp))
E(salu("s_add_u32", sPq[1], sPq[0], QSTR))
E(salu("s_mul_i32", sTmp, sWave, NSTR))
E(salu("s_add_u32", sPq[2], sPart, sTmp))
E(salu("s_add_u32", sPq[2], sPq[2], 8 * QSTR))
P.wait_tag("WO0", lgkm=0)
P.barrier()
def O9f(D, u): return v(128 + (D * 2 + u) * 4, 4)
for f in range(16):
    E(dsr("ds_read_b128", O9f(f >> 1, f & 1), vLin, LDS_Q9 + f * 1024))
def oacc(p, N, qt): return a((p % 2) * 128 + (N * 2 + qt) * 16, 16)
def o9acc(p): return O9(p % 2)
def opool(i): return v(224 + 4 * i, 4)
NOP_ = 5
stg = v(244 - 0, 1)
def wo_imm(D, u, i, N): return (8 * D + 4 * u + 2 * i) * BLK + N * 256

def store_items(p):
    L = []
    nN = 4 if p < 3 else 2
    tm = [v(250), v(251), v(252), v(253), v(254), v(255)]
    return L

def store_quarter(p):
    L = []
    nN = 4 if p < 3 else 2
    quad = v(252, 4); t0, t1 = v(250), v(251)
    for N in range(nN):
        nt = 4 * p + N
        for qt in range(2):
            acc = oacc(p, N, qt)
            for a1 in range(2):
                g = []
                for k in range(4):
                    g.append(valu("v_accvgpr_read_b32", t0, acc[8 * a1 + 2 * k]))
                    g.append(valu("v_accvgpr_read_b32", t1, acc[8 * a1 + 2 * k + 1]))
                    g.append(valu("v_cvt_pk_bf16_f32", quad[k], t0, t1))
                L += g
                L.append([salu("s_add_u32", sTmp, sPq[qt], nt * NSTR + a1 * ASTR),
                          bufst("buffer_store_dwordx4", quad, vLin, sWS, sTmp, 0)])
    acc = o9acc(p)
    for a1 in range(2):
        for k in range(4):
            L.append(valu("v_cvt_pk_bf16_f32", quad[k], acc[8 * a1 + 2 * k], acc[8 * a1 + 2 * k + 1]))
        L.append([salu("s_add_u32", sTmp, sPq[2] if p < 3 else s(51), 4 * p * NSTR + a1 * ASTR),
                  bufst("buffer_store_dwordx4", quad, vLin, sWS, sTmp, 0)])
    return L

for p in range(4):
    P.comment(f"---- OP quarter {p}")
    nN = 4 if p < 3 else 2
    ad, ad9 = (vAOk, vAO9k) if p % 2 == 0 else (vAOv, vAO9v)
    if p == 3:
        E(salu("s_lshl_b32", sTmp, sQH, 8))
        E(valu("v_add_u32", vAO9v, sTmp, vAOv))
        E(salu("s_mul_i32", sTmp, sQH, NSTR))
        E(salu("s_add_u32", s(51), sPart, sTmp))
        E(salu("s_add_u32", s(51), s(51), 8 * QSTR))
    frs = []
    for D in range(8):
        for u in range(2):
            first = (D == 0 and u == 0)
            for N in range(nN):
                frs.append((lambda dst, D=D, u=u, N=N: tr_pair(dst, ad, wo_imm(D, u, 0, N), wo_imm(D, u, 1, N)),
                            [lambda fr, D=D, u=u, N=N, qt=qt, first=first: mfma32(oacc(p, N, qt), fr, Qf(qt, 2 * D + u), 0 if first else oacc(p, N, qt)) for qt in range(2)]))
            frs.append((lambda dst, D=D, u=u: tr_pair(dst, ad9, wo_imm(D, u, 0, 0), wo_imm(D, u, 1, 0)),
                        [lambda fr, D=D, u=u, first=first: mfma32(o9acc(p), fr, O9f(D, u), 0 if first else o9acc(p))]))
    PREO = 4
    for k in range(PREO): E(frs[k][0](opool(k % NOP_)))
    bb = []; fl = []
    for k, (rd, mfs) in enumerate(frs):
        f0 = len(bb)
        for mf in mfs: bb.append(mf(opool(k % NOP_)))
        if k + PREO < len(frs):
            fl.append((f0, frs[k + PREO][0](opool((k + PREO) % NOP_))))
    extra = []
    if p >= 1:
        st = store_quarter(p - 1)
        fl += spread(st, 2, len(bb) - 4)
    if p == 1:
        for i in range(4): extra += dma_wo(2, i)
    if p == 2:
        for i in range(4): extra += dma_wo(3, i)
    fl += spread(extra, 0, 40)
    fl.sort(key=lambda x: x[0])
    schedule(P, bb, fl)
    if p < 3:
        P.wait_tag(f"WO{p+1}", lgkm=0)
        P.barrier()
E(store_quarter(3))
P.wait(vm=0)
P.label("L_exit")
E(raw("s_endpgm", 'branch'))

for par in range(2):
    P.label(f"L_rare{par}")
    P.nop(16)
    free = Sbuf(par, 0)
    fr2 = Sbuf(par, 1)
    for qt in range(2):
        xs = Sbuf(1 - par, qt)
        t0, t1, F = fr2[0], fr2[1], fr2[2]
        E(valu("v_max3_f32", t0, xs[0], xs[1], xs[2]))
        for k in range(3, 15, 2): E(valu("v_max3_f32", t0, t0, xs[k], xs[k + 1]))
        E(valu("v_max_f32", t0, t0, xs[15]))
        E(valu("v_mov_b32", t1, t0))
        E(Ins(f"v_permlane32_swap_b32 {t0}, {t1}", 'valu', t0.regs() + t1.regs(), t0.regs() + t1.regs()))
        E(valu("v_max3_f32", t0, t0, t1, 0))
        for k in range(16): E(valu("v_sub_f32", xs[k], xs[k], t0))
        E(valu("v_sub_f32", vNegm[qt], vNegm[qt], t0))
        E(valu("v_sub_f32", F, 0, t0))
        E(trans("v_exp_f32", F, F))
        E(valu("v_mul_f32", vL[qt], vL[qt], F))
        for D in range(8):
            acc = Oacc(qt, D)
            for k in range(16): E(valu("v_accvgpr_read_b32", free[k], acc[k]))
            for k in range(16): E(valu("v_mul_f32", free[k], free[k], F))
            for k in range(16): E(valu("v_accvgpr_write_b32", acc[k], free[k]))
    P.nop(4)
    E(raw(f"s_setpc_b64 {sRet}", 'branch', sRet.regs()))

main_text = P.text()
print("loop counts:", dict(P.count(loop_start, loop_end)), file=sys.stderr)
print("total instrs:", len(P.out), "nops inserted:", P.nops_inserted, file=sys.stderr)
for l in [x for x in P.log if "m0" not in x][:60]: print("  ", l, file=sys.stderr)

Q = Prog(); E = Q.emit
Q.label("reduce_kernel")
E(scmp("s_cmp_ge_u32", s(2), 504))
E(raw("s_cbranch_scc1 L_rexit", 'branch'))
E(raw("s_load_dwordx2 s[4:5], s[0:1], 80", 'misc', [], ['s4', 's5']))
E(raw("s_load_dwordx2 s[6:7], s[0:1], 96", 'misc', [], ['s6', 's7']))
E(valu("v_and_b32", v(1), 63, v(0)))
E(valu("v_lshrrev_b32", v(2), 6, v(0)))
E(valu("v_lshlrev_b32", v(3), 4, v(1)))
E(valu("v_readfirstlane_b32", s(16), v(2)))
E(salu("s_lshl_b32", s(17), s(2), 2))
E(salu("s_add_u32", s(17), s(17), s(16)))
E(salu("s_lshl_b32", s(18), s(17), 15))
E(salu("s_mul_hi_u32", s(19), s(17), "0x12492493", scc=False))
E(salu("s_mul_i32", s(20), s(19), 14))
E(salu("s_sub_u32", s(20), s(17), s(20)))
E(salu("s_mul_hi_u32", s(21), s(19), "0x1c71c71d", scc=False))
E(salu("s_mul_i32", s(22), s(21), 9))
E(salu("s_sub_u32", s(22), s(19), s(22)))
E(salu("s_lshr_b32", s(23), s(21), 3))
E(salu("s_and_b32", s(24), s(21), 7))
E(salu("s_mul_i32", s(25), s(24), 288))
E(salu("s_lshl_b32", s(26), s(22), 5))
E(salu("s_add_u32", s(25), s(25), s(26)))
E(salu("s_mul_i32", s(25), s(25), 896))
E(salu("s_mul_i32", s(26), s(23), 448))
E(salu("s_add_u32", s(25), s(25), s(26)))
E(salu("s_lshl_b32", s(26), s(20), 5))
E(salu("s_add_u32", s(25), s(25), s(26)))
E(salu("s_lshl_b32", s(25), s(25), 1))
E(raw("s_waitcnt lgkmcnt(0)", 'wait'))
E(salu("s_mov_b32", s(8), s(6), scc=False)); E(salu("s_mov_b32", s(9), s(7), scc=False))
E(salu("s_mov_b32", s(10), 287244288, scc=False)); E(salu("s_mov_b32", s(11), "0x00020000", scc=False))
E(salu("s_mov_b32", s(12), s(4), scc=False)); E(salu("s_mov_b32", s(13), s(5), scc=False))
E(salu("s_mov_b32", s(14), 8 * 288 * 896 * 2, scc=False)); E(salu("s_mov_b32", s(15), "0x00020000", scc=False))
for k in range(32):
    E(bufld("buffer_load_dwordx4", v(32 + 4 * k, 4), v(3), s(8, 4), s(18), (k % 4) * 1024))
    if k % 4 == 3: E(salu("s_add_u32", s(18), s(18), 4096))
E(valu("v_and_b32", v(4), 31, v(1)))
E(valu("v_mul_u32_u24", v(4), 1792, v(4)))
E(valu("v_lshrrev_b32", v(5), 5, v(1)))
E(valu("v_lshl_add_u32", v(4), v(5), 4, v(4)))
E(salu("s_mov_b32", s(27), "0xffff0000", scc=False))
for a1 in range(2):
    acc = v(8, 8)
    for h in range(16):
        src = v(32 + 4 * (a1 * 16 + h), 4)
        for k in range(4):
            if h == 0:
                E(valu("v_lshlrev_b32", acc[2 * k], 16, src[k]))
                E(valu("v_and_b32", acc[2 * k + 1], s(27), src[k]))
            else:
                E(valu("v_lshlrev_b32", v(6), 16, src[k]))
                E(valu("v_and_b32", v(7), s(27), src[k]))
                E(valu("v_add_f32", acc[2 * k], acc[2 * k], v(6)))
                E(valu("v_add_f32", acc[2 * k + 1], acc[2 * k + 1], v(7)))
    o = v(16 + 4 * a1, 4)
    for k in range(4):
        E(valu("v_cvt_pk_bf16_f32", o[k], acc[2 * k], acc[2 * k + 1]))
    E(bufst("buffer_store_dwordx4", o, v(4), s(12, 4), s(25), a1 * 32))
Q.wait(vm=0)
Q.label("L_rexit")
E(raw("s_endpgm", 'branch'))

hdr = open(f"cdna_kernels/{NAME}.s.ref").read().split("\n")
hdr = [l for l in hdr if l.startswith(";") and "@launch" not in l and "Override launch" not in l and "grid=ceil" not in l]
out = "\n".join(hdr) + "\n"
out += f"; @launch kernel={NAME}_kernel grid=(256,1,1) block=(256,1,1) lds={LDS_TOTAL}\n"
if DEBUG is None:
    out += f"; @launch kernel=reduce_kernel grid=(504,1,1) block=(256,1,1) lds=0\n"
out += f""".amdgcn_target "amdgcn-amd-amdhsa--gfx950"
.text
.globl {NAME}_kernel
.p2align 8
.type {NAME}_kernel,@function
""" + main_text + """
.globl reduce_kernel
.p2align 8
.type reduce_kernel,@function
""" + Q.text() + f"""
.section .rodata,"a"
.p2align 6
.amdhsa_kernel {NAME}_kernel
  .amdhsa_next_free_vgpr 512
  .amdhsa_next_free_sgpr 96
  .amdhsa_accum_offset 256
  .amdhsa_group_segment_fixed_size 0
  .amdhsa_kernarg_size 104
  .amdhsa_user_sgpr_count 2
  .amdhsa_user_sgpr_kernarg_segment_ptr 1
  .amdhsa_system_sgpr_workgroup_id_x 1
.end_amdhsa_kernel
.p2align 6
.amdhsa_kernel reduce_kernel
  .amdhsa_next_free_vgpr 160
  .amdhsa_next_free_sgpr 32
  .amdhsa_accum_offset 160
  .amdhsa_group_segment_fixed_size 0
  .amdhsa_kernarg_size 104
  .amdhsa_user_sgpr_count 2
  .amdhsa_user_sgpr_kernarg_segment_ptr 1
  .amdhsa_system_sgpr_workgroup_id_x 1
.end_amdhsa_kernel
"""
open(OUTPATH, "w").write(out)
print("wrote", OUTPATH, len(out), "bytes", file=sys.stderr)
```
